```python
import torch

def _softmax(x, axis=-1):
    return torch.softmax(x, dim=axis)

def _gelu(x):
    return torch.nn.functional.gelu(x, approximate='tanh')

def _silu(x):
    return torch.nn.functional.silu(x)

def _sigmoid(x):
    return torch.sigmoid(x)

def _layernorm(x, axis=-1, eps=1e-05):
    m = x.mean(dim=axis, keepdim=True)
    v = x.var(dim=axis, keepdim=True, unbiased=False)
    return (x - m) / torch.sqrt(v + eps)

def _scatter_add(tgt, idx, src, axis=0):
    return tgt.clone().index_add_(axis, idx, src)

def _segment_sum(src, seg, n):
    out = torch.zeros((n,) + src.shape[1:], dtype=src.dtype)
    return out.index_add_(0, seg, src)

def _pad(x, pw):
    flat = tuple((v for pair in reversed(pw) for v in pair))
    return torch.nn.functional.pad(x, flat)
kernel_name = 'interleave_layers__ssm_conv_h3__memory_aug_recurrent_mem_tr__prompt'

def setup_inputs():

    _w = lambda a: (lambda t: t.to(torch.bfloat16) if t.is_floating_point() else t)(torch.as_tensor(a))

    def _A_setup():
        B, S, D = (1, 2048, 448)
        ks = 4
        return {'q': _w((lambda *s: torch.randn(*s, dtype=torch.bfloat16) * 0.05)(B, S, D)), 'k': _w((lambda *s: torch.randn(*s, dtype=torch.bfloat16) * 0.2)(B, S, D)), 'v': _w((lambda *s: torch.randn(*s, dtype=torch.bfloat16) * 0.2)(B, S, D)), 'shift_k': _w((lambda *s: torch.randn(*s, dtype=torch.bfloat16) * 0.2)(D, ks) * 0.5), 'ssm_k': _w((lambda *s: torch.randn(*s, dtype=torch.bfloat16) * 0.2)(D, S) * (1.0 / S ** 0.5)), 'ssm_D': _w((lambda *s: torch.randn(*s, dtype=torch.bfloat16) * 0.2)(D))}
    _A_in = _A_setup()

    def _B_setup():
        B, S, Dm = (1, 2048, 448)
        H, Dh = (16, 256)
        M, seg = (8, 32)
        seg = min(seg, S)
        S = S // seg * seg
        return {'x': _w((lambda *s: torch.randn(*s, dtype=torch.bfloat16) * 0.05)(B, S, Dm)), 'mem0': _w((lambda *s: torch.randn(*s, dtype=torch.bfloat16) * 0.2)(B, M, Dm)), 'Wq': _w((lambda *s: torch.randn(*s, dtype=torch.bfloat16) * 1.6)(Dm, H, Dh) * Dm ** (-0.5)), 'Wk': _w((lambda *s: torch.randn(*s, dtype=torch.bfloat16) * 1.6)(Dm, H, Dh) * Dm ** (-0.5)), 'Wv': _w((lambda *s: torch.randn(*s, dtype=torch.bfloat16) * 0.2)(Dm, H, Dh) * Dm ** (-0.5)), 'Wo': _w((lambda *s: torch.randn(*s, dtype=torch.bfloat16) * 0.2)(H, Dh, Dm) * (H * Dh) ** (-0.5)), 'seg_len': seg}
    _B_in = _B_setup()
    return {'A_q': _A_in['q'], 'A_k': _A_in['k'], 'A_v': _A_in['v'], 'A_shift_k': _A_in['shift_k'], 'A_ssm_k': _A_in['ssm_k'], 'A_ssm_D': _A_in['ssm_D'], 'B_x': _B_in['x'], 'B_mem0': _B_in['mem0'], 'B_Wq': _B_in['Wq'], 'B_Wk': _B_in['Wk'], 'B_Wv': _B_in['Wv'], 'B_Wo': _B_in['Wo'], 'B_seg_len': _B_in['seg_len']}

def reference(A_q, A_k, A_v, A_shift_k, A_ssm_k, A_ssm_D, B_x, B_mem0, B_Wq, B_Wk, B_Wv, B_Wo, B_seg_len):

    def _A_ref(q, k, v, shift_k, ssm_k, ssm_D):
        B, S, D = q.shape
        ks = shift_k.shape[-1]
        k_pad = _pad(k, ((0, 0), (ks - 1, 0), (0, 0)))
        k_shift = torch.zeros_like(k)
        for t in range(ks):
            k_shift = k_shift + k_pad[:, t:t + S, :] * shift_k[:, ks - 1 - t][None, None, :]
        kv = k_shift * v
        L = 2 * S
        kv_pad = _pad(kv, ((0, 0), (0, S), (0, 0)))
        kf_pad = _pad(ssm_k, ((0, 0), (0, S)))
        kv_f = (lambda x, axes=(-2, -1): torch.fft.rfft2(x.float(), dim=axes))(kv_pad[:, None, :, :], axes=(1, 2))
        kf_f = (lambda x, axes=(-2, -1): torch.fft.rfft2(x.float(), dim=axes))(kf_pad[:, None, :], axes=(1, 2))
        kf_f = (lambda x, *d: x.permute(*d))(kf_f, 1, 2, 0)
        y_f = kv_f * kf_f[None, :, :, :]
        y = (lambda x, s, axes=(-2, -1): torch.fft.irfft2(x, s=s, dim=axes).to(torch.bfloat16))(y_f, (1, L), axes=(1, 2))[:, 0, :S, :]
        y = y + kv * ssm_D[None, None, :]
        return q * y

    def _B_ref(x, mem0, Wq, Wk, Wv, Wo, seg_len):
        B, S, Dm = x.shape
        H, Dh = (Wq.shape[1], Wq.shape[2])
        M = mem0.shape[1]
        scale = Dh ** (-0.5)
        n_seg = S // seg_len
        L = M + seg_len
        idx = torch.arange(L)
        mask = (idx[:, None] < M) | (idx[:, None] >= idx[None, :])
        mem = mem0
        outs = []
        for s in range(n_seg):
            xs = x[:, s * seg_len:(s + 1) * seg_len, :].clone()
            h = torch.concatenate([mem, xs], axis=1)
            q = torch.einsum('btd,dhe->bhte', h, Wq)
            k = torch.einsum('btd,dhe->bhte', h, Wk)
            v = torch.einsum('btd,dhe->bhte', h, Wv)
            scores = torch.einsum('bhqe,bhke->bhqk', q, k) * scale
            scores = torch.where(mask[None, None], scores, -1000000000.0)
            p = _softmax(scores, axis=-1)
            o = torch.einsum('bhqk,bhke->bhqe', p, v)
            o = torch.einsum('bhte,hed->btd', o, Wo)
            mem = o[:, :M, :].clone()
            outs.append(o[:, M:, :])
        return torch.concatenate(outs, axis=1)
    x = A_q
    x = x + _A_ref(_layernorm(x, axis=-1), A_k, A_v, A_shift_k, A_ssm_k, A_ssm_D)
    x = x + _B_ref(_layernorm(x, axis=-1), B_mem0, B_Wq, B_Wk, B_Wv, B_Wo, B_seg_len)
    x = x + _A_ref(_layernorm(x, axis=-1), A_k, A_v, A_shift_k, A_ssm_k, A_ssm_D)
    x = x + _B_ref(_layernorm(x, axis=-1), B_mem0, B_Wq, B_Wk, B_Wv, B_Wo, B_seg_len)
    return x
```

```python
from lib import *
def gen():
    n='prep_kernel'; kstart(n)
    e('s_load_dwordx4 s[8:11], s[0:1], 64'); e('s_load_dwordx4 s[12:15], s[0:1], 80')
    e('s_load_dwordx2 s[20:21], s[0:1], 120'); e('s_waitcnt lgkmcnt(0)')
    e(f's_mov_b32 s22, {WSZ}'); e('s_mov_b32 s23, 0x00020000')
    e('s_cmp_ge_u32 s2, 2688'); e('s_cbranch_scc1 P_wo')
    e('s_mul_hi_u32 s3, s2, 0x5555556'); e('s_mul_i32 s4, s3, 48'); e('s_sub_u32 s4, s2, s4')
    e('s_lshr_b32 s5, s4, 4')
    e('s_mov_b32 s16, s8'); e('s_mov_b32 s17, s9')
    e('s_cmp_eq_u32 s5, 1'); e('s_cselect_b32 s16, s10, s16'); e('s_cselect_b32 s17, s11, s17')
    e('s_cmp_eq_u32 s5, 2'); e('s_cselect_b32 s16, s12, s16'); e('s_cselect_b32 s17, s13, s17')
    e(f's_mov_b32 s18, {448*4096*2}'); e('s_mov_b32 s19, 0x00020000')
    e('s_and_b32 s6, s4, 15'); e('s_lshl_b32 s6, s6, 8')
    e('v_add_u32 v1, s6, v0'); e('v_lshlrev_b32 v1, 1, v1')
    e('s_lshl_b32 s7, s3, 16'); e('v_add_u32 v1, s7, v1')
    for i in range(8): e(f'buffer_load_ushort v{10+i}, v1, s[16:19], 0 offen offset:0' if i==0 else f'v_add_u32 v1, 0x2000, v1\nbuffer_load_ushort v{10+i}, v1, s[16:19], 0 offen')
    e('s_lshl_b32 s6, s4, 8'); e('v_add_u32 v2, s6, v0'); e('v_mul_u32_u24 v2, 896, v2')
    e('s_lshl_b32 s7, s3, 4'); e('v_add_u32 v2, s7, v2')
    e('s_branch P_pack')
    lab('P_wo')
    e('s_cmp_ge_u32 s2, 3584'); e('s_cbranch_scc1 P_poison')
    e('s_sub_u32 s3, s2, 2688'); e('s_lshl_b32 s3, s3, 8'); e('v_add_u32 v3, s3, v0')
    e('s_mov_b32 s4, 9587'); e('v_mul_hi_u32 v4, v3, s4')
    L.pop(); L.pop()
    e('v_cvt_f32_u32 v4, v3'); e('v_mul_f32 v4, 0x3b124925, v4'); e('v_cvt_u32_f32 v4, v4')
    e('v_mul_u32_u24 v5, 448, v4'); e('v_sub_u32 v5, v3, v5')
    e('v_cmp_gt_i32 vcc, 0, v5'); e('s_nop 1'); e('v_subbrev_co_u32 v4, vcc, 0, v4, vcc')
    e('v_mul_u32_u24 v5, 448, v4'); e('v_sub_u32 v5, v3, v5')
    e('v_cmp_le_u32 vcc, 448, v5'); e('s_nop 1'); e('v_addc_co_u32 v4, vcc, 0, v4, vcc')
    e('v_mul_u32_u24 v5, 448, v4'); e('v_sub_u32 v5, v3, v5')
    e('s_mov_b32 s16, s14'); e('s_mov_b32 s17, s15'); e(f's_mov_b32 s18, {448*4096*2}'); e('s_mov_b32 s19, 0x00020000')
    e('v_mul_u32_u24 v1, 7168, v4'); e('v_lshl_add_u32 v1, v5, 1, v1')
    for i in range(8): e(f'v_add_u32 v6, {i*896}, v1\nbuffer_load_ushort v{10+i}, v6, s[16:19], 0 offen')
    e('v_lshlrev_b32 v2, 13, v5'); e('v_lshl_add_u32 v2, v4, 4, v2'); e(f'v_add_u32 v2, {WOT}, v2')
    lab('P_pack')
    e('s_waitcnt vmcnt(0)')
    for i in range(4): e(f'v_lshl_or_b32 v{20+i}, v{11+2*i}, 16, v{10+2*i}')
    e('buffer_store_dwordx4 v[20:23], v2, s[20:23], 0 offen'); e('s_endpgm')
    lab('P_poison')
    npo=(EXEND-EXS)//16//256
    e(f's_cmp_ge_u32 s2, {3584+npo}'); e('s_cbranch_scc1 P_end')
    e('s_sub_u32 s3, s2, 3584'); e('s_lshl_b32 s3, s3, 12'); e(f's_add_u32 s3, s3, {EXS}')
    e('v_lshl_add_u32 v2, v0, 4, s3')
    for i in range(4): e(f'v_mov_b32 v{20+i}, -1')
    e('buffer_store_dwordx4 v[20:23], v2, s[20:23], 0 offen')
    lab('P_end')
    kend(n,32)
    return 3584+npo
```

```python
from lib import *
def rb(d,s,t):
    e(f'v_cvt_pk_bf16_f32 v{d}, v{s}, v{s}'); e(f'v_lshlrev_b32 v{d}, 16, v{d}')
KVO=H
def gen_kv():
    n='kv_kernel'; kstart(n)
    e('s_cmp_ge_u32 s2, 3584'); e('s_cbranch_scc1 KV_end')
    srd(4,1,S*D*2); srd(8,2,S*D*2); srd(12,3,448*8); srd(16,15,WSZ)
    e('s_lshl_b32 s3, s2, 8'); e('v_add_u32 v1, s3, v0')
    e('v_cvt_f32_u32 v4, v1'); e('v_mul_f32 v4, 0x3b124925, v4'); e('v_cvt_u32_f32 v4, v4')
    e('v_mul_u32_u24 v5, 448, v4'); e('v_sub_u32 v5, v1, v5')
    e('v_cmp_gt_i32 vcc, 0, v5'); e('s_nop 1'); e('v_subbrev_co_u32 v4, vcc, 0, v4, vcc')
    e('v_mul_u32_u24 v5, 448, v4'); e('v_sub_u32 v5, v1, v5')
    e('v_cmp_le_u32 vcc, 448, v5'); e('s_nop 1'); e('v_addc_co_u32 v4, vcc, 0, v4, vcc')
    e('v_mul_u32_u24 v5, 448, v4'); e('v_sub_u32 v5, v1, v5')
    e('v_lshlrev_b32 v2, 1, v1')
    e('v_lshlrev_b32 v6, 3, v5'); e('buffer_load_dwordx2 v[20:21], v6, s[12:15], 0 offen')
    e('buffer_load_ushort v30, v2, s[8:11], 0 offen')
    for j in range(4):
        e(f'v_subrev_u32 v7, {(3-j)*896}, v2'); e(f'buffer_load_ushort v{10+j}, v7, s[4:7], 0 offen')
    e('s_waitcnt vmcnt(0)')
    e('v_lshlrev_b32 v22, 16, v20'); e('v_and_b32 v23, 0xffff0000, v20'); e('v_lshlrev_b32 v24, 16, v21'); e('v_and_b32 v25, 0xffff0000, v21')
    e('v_mov_b32 v40, 0')
    for j in range(4):
        e(f'v_lshlrev_b32 v{10+j}, 16, v{10+j}'); e(f'v_mul_f32 v41, v{10+j}, v{25-j}'); rb(41,41,0)
        e('v_add_f32 v40, v40, v41'); rb(40,40,0)
    e('v_lshlrev_b32 v30, 16, v30'); e('v_mul_f32 v40, v40, v30'); e('v_cvt_pk_bf16_f32 v40, v40, v40')
    e(f'v_add_u32 v2, {KVO}, v2'); e('buffer_store_short v40, v2, s[16:19], 0 offen')
    lab('KV_end'); kend(n,48)
def gen_conv():
    n='conv_kernel'; kstart(n)
    e('s_cmp_ge_u32 s2, 224'); e('s_cbranch_scc1 CV_end')
    srd(4,4,448*4096); srd(8,15,WSZ); srd(12,5,896)
    e('v_lshrrev_b32 v1, 6, v0'); e('s_nop 0'); e('v_readfirstlane_b32 s3, v1'); e('s_lshl_b32 s20, s2, 2'); e('s_add_u32 s3, s3, s20')
    e('s_mul_hi_u32 s21, s3, 0x24924925'); e('s_mul_i32 s22, s21, 7'); e('s_sub_u32 s22, s3, s22')
    e('v_and_b32 v1, 63, v0'); e('s_lshl_b32 s22, s22, 6'); e('v_add_u32 v1, s22, v1')
    e('v_lshlrev_b32 v2, 1, v1'); e('v_lshlrev_b32 v3, 12, v1')
    e('buffer_load_ushort v90, v2, s[12:15], 0 offen')
    e('s_mov_b32 s24, 0')
    lab('CV_blk')
    e('s_mov_b32 s25, s21'); e('s_cmp_eq_u32 s24, 0'); e('s_cbranch_scc1 CV_a'); e('s_sub_u32 s25, 255, s21'); lab('CV_a')
    for i in range(8): e(f'v_mov_b32 v{50+i}, 0')
    e('s_mov_b32 s26, 0')
    lab('CV_u')
    e('s_mul_i32 s27, s26, 7168'); e(f's_add_u32 s27, s27, {KVO}')
    for j in range(8): e(f'v_add_u32 v5, {j*896}, v2\nbuffer_load_ushort v{10+j}, v5, s[8:11], s27 offen')
    e('s_sub_u32 s28, s25, s26'); e('s_lshl_b32 s28, s28, 4'); e('s_sub_u32 s28, s28, 16')
    e('v_add_u32 v4, s28, v3')
    e('s_cmp_eq_u32 s25, s26'); e('s_cbranch_scc1 CV_z')
    e('buffer_load_dwordx4 v[20:23], v4, s[4:7], 0 offen'); e('s_branch CV_z2')
    lab('CV_z')
    for i in range(4): e(f'v_mov_b32 v{20+i}, 0')
    lab('CV_z2')
    e('buffer_load_dwordx4 v[24:27], v4, s[4:7], 0 offen offset:16')
    e('s_waitcnt vmcnt(0)')
    for q in range(8):
        e(f'v_lshlrev_b32 v{30+2*q}, 16, v{20+q}'); e(f'v_and_b32 v{31+2*q}, 0xffff0000, v{20+q}')
        e(f'v_lshlrev_b32 v{10+q}, 16, v{10+q}')
    for i in range(8):
        for j in range(8): e(f'v_fmac_f32 v{50+i}, v{10+j}, v{30+8+i-j}')
    e('s_add_u32 s26, s26, 1'); e('s_cmp_le_u32 s26, s25'); e('s_cbranch_scc1 CV_u')
    e('v_lshlrev_b32 v91, 16, v90')
    e('s_mul_i32 s27, s25, 7168'); e(f's_add_u32 s27, s27, {Y}')
    for i in range(8):
        rb(50+i,50+i,0); e(f'v_mul_f32 v92, v{10+i}, v91'); rb(92,92,0); e(f'v_add_f32 v92, v92, v{50+i}')
        e('v_cvt_pk_bf16_f32 v92, v92, v92'); e(f'v_add_u32 v5, {i*896}, v2\nbuffer_store_short v92, v5, s[8:11], s27 offen')
    e('s_add_u32 s24, s24, 1'); e('s_cmp_lt_u32 s24, 2'); e('s_cbranch_scc1 CV_blk')
    lab('CV_end'); kend(n,96)
def lnorm(src,dst):
    def red(r):
        for m in (1,2,4,8,16): e(f'ds_swizzle_b32 v{r+1}, v{r} offset:{(m<<10)|0x1f}'); e('s_waitcnt lgkmcnt(0)'); e(f'v_add_f32 v{r}, v{r}, v{r+1}')
        e('s_nop 0'); e(f'v_readlane_b32 s30, v{r}, 0'); e(f'v_readlane_b32 s31, v{r}, 32'); e('s_nop 1')
        e(f'v_mov_b32 v{r}, s30'); e(f'v_add_f32 v{r}, s31, v{r}')
    e(f'v_mov_b32 v60, v{src}')
    for i in range(1,7): e(f'v_add_f32 v60, v60, v{src+i}')
    red(60); e('v_mul_f32 v60, 0x3b124925, v60')
    e('v_mov_b32 v62, 0')
    for i in range(7): e(f'v_sub_f32 v63, v{src+i}, v60'); e('v_fmac_f32 v62, v63, v63')
    red(62); e('v_mul_f32 v62, 0x3b124925, v62'); rb(62,62,0); rb(60,60,0)
    e('v_add_f32 v62, 0x3727c5ac, v62'); rb(62,62,0); e('v_sqrt_f32 v62, v62'); e('s_nop 0'); rb(62,62,0); e('v_rcp_f32 v62, v62'); e('s_nop 0')
    for i in range(7):
        e(f'v_sub_f32 v63, v{src+i}, v60'); rb(63,63,0); e('v_mul_f32 v63, v63, v62'); rb(dst+i,63,0)
def gen_row(name,first):
    kstart(name)
    e('s_cmp_ge_u32 s2, 512'); e(f's_cbranch_scc1 {name}_end')
    srd(8,15,WSZ)
    if first: srd(4,0,S*D*2)
    else: srd(4,15,WSZ,X)
    e('v_lshrrev_b32 v1, 6, v0'); e('v_lshl_add_u32 v1, s2, 2, v1'); e('v_mul_u32_u24 v1, 896, v1'); e('v_and_b32 v2, 63, v0'); e('v_lshl_add_u32 v1, v2, 1, v1')
    e(f'v_add_u32 v3, {Y}, v1')
    for i in range(7): e(f'buffer_load_ushort v{10+i}, v1, s[4:7], 0 offen offset:{i*128}'); e(f'buffer_load_ushort v{20+i}, v3, s[8:11], 0 offen offset:{i*128}')
    e('s_waitcnt vmcnt(0)')
    for i in range(7): e(f'v_lshlrev_b32 v{10+i}, 16, v{10+i}'); e(f'v_lshlrev_b32 v{20+i}, 16, v{20+i}')
    lnorm(10,30)
    for i in range(7):
        e(f'v_mul_f32 v{30+i}, v{30+i}, v{20+i}'); rb(30+i,30+i,0); e(f'v_add_f32 v{10+i}, v{10+i}, v{30+i}'); rb(10+i,10+i,0)
    lnorm(10,30)
    e(f'v_add_u32 v3, {X}, v1'); e(f'v_add_u32 v4, {H}, v1')
    for i in range(7):
        e(f'v_lshrrev_b32 v{10+i}, 16, v{10+i}'); e(f'v_lshrrev_b32 v{30+i}, 16, v{30+i}')
        e(f'buffer_store_short v{10+i}, v3, s[8:11], 0 offen offset:{i*128}'); e(f'buffer_store_short v{30+i}, v4, s[8:11], 0 offen offset:{i*128}')
    lab(f'{name}_end'); kend(name,72)
```

```python
from lib import *
def gen(name,NT,MT,Nn,K,aoff,woff,mode):
    kstart(name); nb=Nn//(16*NT); mb=2048//(16*MT); W=nb*mb
    e(f's_cmp_ge_u32 s2, {W//4}'); e(f's_cbranch_scc1 {name}_end')
    srd(8,15,WSZ)
    if mode==2: srd(12,13,S*D*2)
    e('v_lshrrev_b32 v1, 6, v0'); e('s_nop 0'); e('v_readfirstlane_b32 s3, v1'); e('s_lshl_b32 s4, s2, 2'); e('s_add_u32 s3, s3, s4')
    e(f's_lshr_b32 s5, s3, {mb.bit_length()-1}'); e(f's_and_b32 s6, s3, {mb-1}')
    e('v_and_b32 v1, 15, v0'); e('v_bfe_u32 v2, v0, 4, 2')
    e(f's_mul_i32 s7, s5, {16*NT}'); e(f's_mul_i32 s16, s6, {16*MT}')
    e('v_add_u32 v3, s7, v1'); e(f'v_mul_u32_u24 v3, {K*2}, v3'); e('v_lshl_add_u32 v3, v2, 4, v3'); e(f'v_add_u32 v3, {woff}, v3')
    e('v_add_u32 v4, s16, v1'); e(f'v_mul_u32_u24 v4, {K*2}, v4'); e('v_lshl_add_u32 v4, v2, 4, v4'); e(f'v_add_u32 v4, {aoff}, v4')
    for i in range(NT*MT*4): e(f'v_mov_b32 v{64+i}, 0')
    e('s_mov_b32 s17, 0'); lab(f'{name}_k')
    for a in range(NT): e(f's_add_u32 s18, s17, {a*16*K*2}'); e(f'buffer_load_dwordx4 v[{16+4*a}:{19+4*a}], v3, s[8:11], s18 offen')
    for b in range(MT): e(f's_add_u32 s18, s17, {b*16*K*2}'); e(f'buffer_load_dwordx4 v[{40+4*b}:{43+4*b}], v4, s[8:11], s18 offen')
    e('s_waitcnt vmcnt(0)')
    for a in range(NT):
        for b in range(MT):
            c=64+4*(a*MT+b); e(f'v_mfma_f32_16x16x32_bf16 v[{c}:{c+3}], v[{16+4*a}:{19+4*a}], v[{40+4*b}:{43+4*b}], v[{c}:{c+3}]')
    e('s_add_u32 s17, s17, 64'); e(f's_cmp_lt_u32 s17, {K*2}'); e(f's_cbranch_scc1 {name}_k')
    e('s_nop 7'); e('s_nop 7')
    RW=12288*2 if mode==0 else 896
    e('v_add_u32 v5, s16, v1'); e(f'v_mul_u32_u24 v5, {RW}, v5'); e('v_lshl_add_u32 v5, v2, 3, v5'); e('s_lshl_b32 s7, s7, 1'); e('v_add_u32 v5, s7, v5')
    for a in range(NT):
        for b in range(MT):
            c=64+4*(a*MT+b); off=a*32+b*16*RW
            e(f'v_cvt_pk_bf16_f32 v6, v{c}, v{c+1}'); e(f'v_cvt_pk_bf16_f32 v7, v{c+2}, v{c+3}')
            e(f'v_add_u32 v10, {off+(QKV if mode==0 else X)}, v5')
            if mode:
                e('buffer_load_dwordx2 v[8:9], v10, s[8:11], 0 offen'); e('s_waitcnt vmcnt(0)')
                for h in range(2):
                    e(f'v_lshlrev_b32 v12, 16, v{6+h}'); e(f'v_and_b32 v13, 0xffff0000, v{6+h}'); e(f'v_lshlrev_b32 v14, 16, v{8+h}'); e(f'v_and_b32 v15, 0xffff0000, v{8+h}')
                    e('v_add_f32 v12, v12, v14'); e('v_add_f32 v13, v13, v15'); e(f'v_cvt_pk_bf16_f32 v{6+h}, v12, v13')
            if mode==2: e(f'v_add_u32 v10, {off}, v5'); e('buffer_store_dwordx2 v[6:7], v10, s[12:15], 0 offen')
            else: e('buffer_store_dwordx2 v[6:7], v10, s[8:11], 0 offen')
            e('s_nop 1')
    lab(f'{name}_end'); kend(name,64+NT*MT*4)
    return W//4
```

```python
from lib import *
MEML=0; QL=7168; OL=QL+3072; RL=OL+1024
def gen(name,ly):
    N=name; kstart(N)
    e('s_cmp_ge_u32 s2, 64'); e(f's_cbranch_scc1 {N}_end')
    srd(8,15,WSZ); srd(12,7,7168)
    e('v_lshrrev_b32 v1, 6, v0'); e('s_nop 0'); e('v_readfirstlane_b32 s3, v1')
    e('v_and_b32 v63, 63, v0'); e('v_and_b32 v1, 15, v0'); e('v_bfe_u32 v2, v0, 4, 2')
    e('s_lshl_b32 s4, s2, 6')
    e('s_lshl_b32 s5, s3, 4'); e('s_add_u32 s5, s5, s4'); e('v_add_u32 v3, s5, v1'); e('v_mul_u32_u24 v3, 896, v3'); e('v_lshl_add_u32 v3, v2, 4, v3')
    for t in range(3):
        for ks in range(14):
            e(f'v_add_u32 v9, {t*4096*896+ks*64}, v3'); e('buffer_load_dwordx4 v[10:13], v9, s[8:11], 0 offen'); e('s_waitcnt vmcnt(0)')
            for i in range(4): e(f'v_accvgpr_write_b32 a{(t*14+ks)*4+i}, v{10+i}')
    e('s_mul_i32 s5, s3, 112'); e('v_add_u32 v3, s5, v1'); e('v_lshlrev_b32 v3, 13, v3'); e('v_lshl_add_u32 v3, v2, 4, v3'); e('s_lshl_b32 s6, s4, 1'); e('v_add_u32 v3, s6, v3')
    for t in range(7):
        for ks in range(2):
            e(f'v_add_u32 v9, {WOT+t*16*8192+ks*64}, v3'); e('buffer_load_dwordx4 v[10:13], v9, s[8:11], 0 offen'); e('s_waitcnt vmcnt(0)')
            for i in range(4): e(f'v_accvgpr_write_b32 a{168+(t*2+ks)*4+i}, v{10+i}')
    e('v_lshlrev_b32 v9, 2, v0')
    for i in range(7): e(f'v_add_u32 v8, {i*1024}, v9\nbuffer_load_dword v10, v8, s[12:15], 0 offen'); e('s_waitcnt vmcnt(0)'); e(f'ds_write_b32 v9, v10 offset:{i*1024}')
    e('v_and_b32 v4, 7, v1'); e('v_mul_u32_u24 v4, 896, v4'); e('v_lshl_add_u32 v4, v2, 4, v4')
    e('v_xor_b32 v60, 16, v63'); e('v_lshlrev_b32 v60, 2, v60'); e('v_xor_b32 v61, 32, v63'); e('v_lshlrev_b32 v61, 2, v61')
    e('s_mov_b32 s20, 0'); e('s_waitcnt lgkmcnt(0)'); e('s_barrier')
    lab(f'{N}_step')
    for i in range(12): e(f'v_mov_b32 v{32+i}, 0')
    for ks in range(14):
        e(f'ds_read_b128 v[10:13], v4 offset:{ks*64}'); e('s_waitcnt lgkmcnt(0)')
        for t in range(3): a=(t*14+ks)*4; e(f'v_mfma_f32_16x16x32_bf16 v[{32+4*t}:{35+4*t}], a[{a}:{a+3}], v[10:13], v[{32+4*t}:{35+4*t}]')
    e('s_nop 7'); e('s_nop 7')
    e('v_lshlrev_b32 v5, 7, v1'); e('v_lshl_add_u32 v5, v2, 3, v5'); e('s_lshl_b32 s5, s3, 5'); e('v_add_u32 v5, s5, v5')
    e('s_lshl_b32 s21, s20, 17'); e('v_lshl_add_u32 v6, v1, 14, s21'); e('s_lshl_b32 s6, s4, 1'); e('v_add_u32 v6, s6, v6'); e('v_lshl_add_u32 v6, v2, 3, v6'); e('v_add_u32 v6, s5, v6'); e(f'v_add_u32 v6, {KVM}, v6')
    e('v_cmp_gt_u32 vcc, 8, v1'); e('s_and_saveexec_b64 s[30:31], vcc')
    for t in range(3):
        e(f'v_cvt_pk_bf16_f32 v10, v{32+4*t}, v{33+4*t}'); e(f'v_cvt_pk_bf16_f32 v11, v{34+4*t}, v{35+4*t}')
        e(f'ds_write_b64 v5, v[10:11] offset:{QL+t*1024}')
        if t: e(f'buffer_store_dwordx2 v[10:11], v6, s[8:11], 0 offen offset:{(t-1)*8192 if t==1 else 0}' ) ; e('v_add_u32 v6, 0x2000, v6')
        e('s_nop 1')
    e('s_mov_b64 exec, s[30:31]'); e('s_waitcnt lgkmcnt(0)'); e('s_barrier')
    e('s_cmp_lg_u32 s3, 0'); e(f's_cbranch_scc1 {N}_w')
    e('s_lshl_b32 s22, s20, 5')
    e('v_add_u32 v7, s22, v1'); e('v_subrev_u32 v7, 8, v7'); e('v_max_i32 v7, 0, v7'); e('v_mul_u32_u24 v7, 24576, v7'); e('v_add_u32 v7, s6, v7'); e('v_lshl_add_u32 v7, v2, 4, v7'); e(f'v_add_u32 v7, {QKV+8192}, v7')
    e('v_min_u32 v8, 7, v1'); e('v_add_u32 v8, s22, v8'); e('v_add_u32 v8, 24, v8'); e('v_mul_u32_u24 v8, 24576, v8'); e('v_add_u32 v8, s6, v8'); e('v_lshl_add_u32 v8, v2, 4, v8'); e(f'v_add_u32 v8, {QKV+8192}, v8')
    e('v_and_b32 v9, 7, v1'); e('v_lshlrev_b32 v9, 7, v9'); e('v_lshl_add_u32 v9, v2, 4, v9')
    for i in range(12): e(f'v_mov_b32 v{32+i}, 0')
    e('v_cmp_gt_u32 vcc, 8, v1')
    for ks in range(2):
        e(f'buffer_load_dwordx4 v[10:13], v7, s[8:11], 0 offen offset:{ks*64}'); e('v_add_u32 v28, 0x60000, v7'); e(f'buffer_load_dwordx4 v[14:17], v28, s[8:11], 0 offen offset:{ks*64}')
        e(f'buffer_load_dwordx4 v[18:21], v8, s[8:11], 0 offen offset:{ks*64}')
        e(f'ds_read_b128 v[22:25], v9 offset:{QL+1024+ks*64}'); e(f'ds_read_b128 v[44:47], v9 offset:{QL+ks*64}'); e('s_waitcnt vmcnt(0) lgkmcnt(0)')
        for i in range(4): e(f'v_cndmask_b32 v{10+i}, v{10+i}, v{22+i}, vcc')
        e('s_nop 1')
        for t in range(3): e(f'v_mfma_f32_16x16x32_bf16 v[{32+4*t}:{35+4*t}], v[{10+4*t}:{13+4*t}], v[44:47], v[{32+4*t}:{35+4*t}]')
    e('s_nop 7'); e('s_nop 7')
    e(f's_add_u32 s23, s20, {ly*64}'); e('s_lshl_b32 s23, s23, 6'); e('s_add_u32 s24, s23, s2'); e('s_mul_i32 s24, s24, 1536'); e(f's_add_u32 s24, s24, {EXS}')
    e('s_and_b32 s25, s2, 60'); e('s_add_u32 s25, s25, s23'); e('s_mul_i32 s25, s25, 1536'); e(f's_add_u32 s25, s25, {EXS}')
    e('v_and_b32 v28, 7, v1'); e('v_lshl_add_u32 v28, v2, 3, v28'); e('v_lshlrev_b32 v28, 4, v28')
    e('v_cmp_gt_u32 vcc, 8, v1'); e('s_and_saveexec_b64 s[30:31], vcc')
    for t in range(3): e(f'buffer_store_dwordx4 v[{32+4*t}:{35+4*t}], v28, s[8:11], s24 offen offset:{t*512 if t<2 else 1024} sc1')
    e('s_mov_b64 exec, s[30:31]')
    e('v_add_u32 v5, 3072, v28')
    lab(f'{N}_p1')
    for j in range(4):
        for t in range(3): e(f'buffer_load_dwordx4 v[{64+16*t+4*j}:{67+16*t+4*j}], v28, s[8:11], s25 offen offset:{(j&1)*1536+t*512} sc1' if j<2 else f'buffer_load_dwordx4 v[{64+16*t+4*j}:{67+16*t+4*j}], v5, s[8:11], s25 offen offset:{(j&1)*1536+t*512} sc1')
    e('s_waitcnt vmcnt(0)'); e('v_mov_b32 v29, 0')
    for j in range(4):
        for t in range(3):
            if t==2: e('v_cmp_gt_u32 s[32:33], 2, v2')
            e(f'v_cmp_eq_u32 vcc, -1, v{64+16*t+4*j}')
            if t==2: e('s_and_b64 vcc, vcc, s[32:33]')
            e('s_nop 1'); e('v_addc_co_u32 v29, vcc, 0, v29, vcc')
    e('v_cmp_ne_u32 vcc, 0, v29'); e('s_nop 1'); e(f's_cbranch_vccnz {N}_p1')
    regs=list(range(32,44))
    for t in range(3):
        for r in range(4):
            c=32+4*t+r; b=64+16*t+r
            e(f'v_add_f32 v{c}, v{b}, v{b+4}'); e(f'v_add_f32 v{c}, v{c}, v{b+8}'); e(f'v_add_f32 v{c}, v{c}, v{b+12}')
            e(f'v_cvt_pk_bf16_f32 v{c}, v{c}, v{c}'); e(f'v_lshlrev_b32 v{c}, 16, v{c}'); e(f'v_mul_f32 v{c}, 0x3d800000, v{c}')
            if t==2: e('v_cmp_gt_u32 vcc, 2, v2'); e('v_mov_b32 v57, 0xce6e6b28'); e('s_nop 0'); e(f'v_cndmask_b32 v{c}, v57, v{c}, vcc')
    e('v_mov_b32 v56, v32')
    for c in regs[1:]: e(f'v_max_f32 v56, v56, v{c}')
    for a in (60,61): e(f'ds_bpermute_b32 v9, v{a}, v56'); e('s_waitcnt lgkmcnt(0)'); e('v_max_f32 v56, v56, v9')
    e('v_mov_b32 v55, 0')
    for c in regs: e(f'v_sub_f32 v{c}, v{c}, v56'); e(f'v_mul_f32 v{c}, 0x3fb8aa3b, v{c}'); e(f'v_exp_f32 v{c}, v{c}'); e('s_nop 0'); e(f'v_add_f32 v55, v55, v{c}')
    for a in (60,61): e(f'ds_bpermute_b32 v9, v{a}, v55'); e('s_waitcnt lgkmcnt(0)'); e('v_add_f32 v55, v55, v9')
    e('v_rcp_f32 v55, v55'); e('s_nop 0')
    for c in regs: e(f'v_mul_f32 v{c}, v{c}, v55'); e(f'v_cvt_pk_bf16_f32 v{c}, v{c}, v{c}'); e(f'v_lshlrev_b32 v{c}, 16, v{c}')
    e('s_mul_i32 s26, s22, 24576'); e('s_add_u32 s26, s26, s6'); e(f's_add_u32 s26, s26, {QKV+16384}'); e('v_lshlrev_b32 v9, 1, v63')
    for k in range(32): e(f's_add_u32 s27, s26, {k*24576}'); e(f'buffer_load_ushort v{72+k}, v9, s[8:11], s27 offen')
    for k in range(8): e(f'ds_read_u16 v{64+k}, v9 offset:{QL+2048+k*128}')
    e('s_waitcnt vmcnt(0) lgkmcnt(0)')
    for k in range(40): e(f'v_lshlrev_b32 v{64+k}, 16, v{64+k}')
    for m in range(8):
        e('v_mov_b32 v110, 0')
        for k in range(40): e(f'v_readlane_b32 s27, v{32+4*(k>>4)+(k&3)}, {((k&15)>>2)*16+m}'); e('s_nop 1'); e(f'v_fmac_f32 v110, s27, v{64+k}')
        e('v_cvt_pk_bf16_f32 v110, v110, v110'); e(f'ds_write_b16 v9, v110 offset:{OL+m*128}')
    e('s_waitcnt lgkmcnt(0)')
    lab(f'{N}_w'); e('s_barrier')
    e('v_and_b32 v9, 7, v1'); e('v_lshlrev_b32 v9, 7, v9'); e('v_lshl_add_u32 v9, v2, 4, v9')
    e(f'ds_read_b128 v[10:13], v9 offset:{OL}'); e(f'ds_read_b128 v[14:17], v9 offset:{OL+64}'); e('s_waitcnt lgkmcnt(0)')
    for t in range(7):
        c=32+4*t
        for i in range(4): e(f'v_mov_b32 v{c+i}, 0')
        e('s_nop 1')
        for ks in range(2): a=168+(t*2+ks)*4; e(f'v_mfma_f32_16x16x32_bf16 v[{c}:{c+3}], a[{a}:{a+3}], v[{10+4*ks}:{13+4*ks}], v[{c}:{c+3}]')
    e('s_nop 7'); e('s_nop 7')
    e('s_and_b32 s28, s20, 1'); e('s_mul_i32 s28, s28, 917504'); e(f's_add_u32 s28, s28, {EXA}'); e('s_mul_i32 s29, s2, 224'); e('s_add_u32 s29, s29, s28')
    e('v_cmp_gt_u32 vcc, 8, v1'); e('s_and_saveexec_b64 s[30:31], vcc')
    for t in range(7):
        for r in range(4):
            e('s_mul_i32 s5, s3, 112'); e(f'v_lshl_add_u32 v5, v2, 2, s5'); e(f'v_add_u32 v5, {16*t+r}, v5')
            e('v_mul_u32_u24 v6, 9363, v5'); e('v_lshrrev_b32 v6, 16, v6'); e('v_mul_u32_u24 v7, 7, v6'); e('v_sub_u32 v7, v5, v7')
            e('v_mul_u32_u24 v6, 14336, v6'); e('v_mul_u32_u24 v8, 28, v1'); e('v_lshl_add_u32 v6, v7, 2, v6'); e('v_add_u32 v6, v6, v8')
            e(f'buffer_store_dword v{32+4*t+r}, v6, s[8:11], s29 offen sc1')
    e('s_mov_b64 exec, s[30:31]')
    e('v_cmp_gt_u32 vcc, 224, v0'); e('s_and_saveexec_b64 s[30:31], vcc'); e(f's_cbranch_execz {N}_r2')
    e('v_mul_u32_u24 v5, 1171, v0'); e('v_lshrrev_b32 v5, 16, v5'); e('v_mul_u32_u24 v6, 56, v5'); e('v_sub_u32 v6, v0, v6')
    e('v_mul_u32_u24 v7, 3584, v5'); e('v_lshl_add_u32 v7, v6, 2, v7'); e('s_mul_i32 s29, s2, 14336'); e('s_add_u32 s29, s29, s28')
    lab(f'{N}_p2'); e('v_mov_b32 v29, 0')
    for i in range(16): e(f'buffer_load_dword v{64+i}, v7, s[8:11], s29 offen offset:{i*224} sc1')
    e('s_waitcnt vmcnt(0)')
    for i in range(16): e(f'v_cmp_eq_u32 vcc, -1, v{64+i}'); e('s_nop 1'); e('v_addc_co_u32 v29, vcc, 0, v29, vcc')
    e('v_cmp_ne_u32 vcc, 0, v29'); e('s_nop 1'); e(f's_cbranch_vccnz {N}_p2')
    e('v_mov_b32 v8, -1')
    for i in range(16): e(f'buffer_store_dword v8, v7, s[8:11], s29 offen offset:{i*224} sc1')
    for i in range(1,16): e(f'v_add_f32 v64, v64, v{64+i}')
    e('v_lshlrev_b32 v9, 2, v0'); e(f'ds_write_b32 v9, v64 offset:{RL}')
    lab(f'{N}_r2'); e('s_mov_b64 exec, s[30:31]'); e('s_waitcnt vmcnt(0) lgkmcnt(0)'); e('s_barrier')
    e('s_add_u32 s24, s23, s2'); e('s_lshl_b32 s24, s24, 7'); e(f's_add_u32 s24, s24, {EXB}')
    e('v_cmp_gt_u32 vcc, 56, v0'); e('s_and_saveexec_b64 s[30:31], vcc'); e(f's_cbranch_execz {N}_r3')
    e('v_lshlrev_b32 v9, 2, v0')
    for q in range(4): e(f'ds_read_b32 v{10+q}, v9 offset:{RL+q*224}')
    e('s_waitcnt lgkmcnt(0)'); e('v_add_f32 v10, v10, v11'); e('v_add_f32 v12, v12, v13'); e('v_add_f32 v10, v10, v12'); e('v_cvt_pk_bf16_f32 v10, v10, v10')
    e('v_lshlrev_b32 v9, 1, v0'); e('buffer_store_short v10, v9, s[8:11], s24 offen sc1')
    lab(f'{N}_r3'); e('s_mov_b64 exec, s[30:31]')
    e('s_lshl_b32 s25, s23, 7'); e(f's_add_u32 s25, s25, {EXB}')
    e('v_lshrrev_b32 v5, 2, v0'); e('v_and_b32 v6, 3, v0'); e('v_lshlrev_b32 v7, 7, v5'); e('v_mul_u32_u24 v8, 28, v6'); e('v_add_u32 v7, v7, v8')
    lab(f'{N}_p3'); e('v_mov_b32 v29, 0')
    for i in range(14): e(f'buffer_load_ushort v{64+i}, v7, s[8:11], s25 offen offset:{i*2} sc1')
    e('s_waitcnt vmcnt(0)')
    for i in range(14): e(f'v_cmp_eq_u32 vcc, 0xffff, v{64+i}'); e('s_nop 1'); e('v_addc_co_u32 v29, vcc, 0, v29, vcc')
    e('v_cmp_ne_u32 vcc, 0, v29'); e('s_nop 1'); e(f's_cbranch_vccnz {N}_p3')
    e('v_mul_u32_u24 v8, 1792, v6'); e('v_mul_u32_u24 v9, 14, v5'); e('v_add_u32 v8, v8, v9')
    for i in range(14): e(f'ds_write_b16 v8, v{64+i} offset:{(i//7)*896+(i%7)*2}')
    e('s_waitcnt lgkmcnt(0)'); e('s_barrier')
    e('s_add_u32 s20, s20, 1'); e('s_cmp_lt_u32 s20, 64'); e(f's_cbranch_scc1 {N}_step')
    lab(f'{N}_end'); kend(N,128+224,128)
```

```python
from lib import *
def gen(name):
    kstart(name)
    e('s_cmp_ge_u32 s2, 256'); e(f's_cbranch_scc1 {name}_end')
    srd(8,15,WSZ)
    e('v_lshrrev_b32 v1, 6, v0'); e('s_nop 0'); e('v_readfirstlane_b32 s3, v1'); e('s_lshl_b32 s4, s2, 2'); e('s_add_u32 s3, s3, s4')
    e('s_lshr_b32 s5, s3, 4'); e('s_and_b32 s6, s3, 15')
    e('v_and_b32 v63, 63, v0'); e('v_and_b32 v1, 15, v0'); e('v_bfe_u32 v2, v0, 4, 2')
    e('s_lshl_b32 s7, s6, 9')
    e('s_lshl_b32 s16, s5, 5')
    e('v_add_u32 v3, s16, v1'); e('v_mul_u32_u24 v3, 24576, v3'); e('v_lshl_add_u32 v3, v2, 4, v3'); e('v_add_u32 v3, s7, v3'); e(f'v_add_u32 v3, {QKV}, v3')
    e('v_add_u32 v4, s16, v1'); e('v_subrev_u32 v4, 8, v4'); e('v_mul_u32_u24 v4, 24576, v4'); e(f'v_add_u32 v4, {QKV+8192}, v4')
    e('v_add_u32 v6, 0x60000, v4')
    e('v_min_u32 v8, 7, v1'); e('v_add_u32 v7, s16, v8'); e('v_add_u32 v7, 24, v7'); e('v_mul_u32_u24 v7, 24576, v7'); e(f'v_add_u32 v7, {QKV+8192}, v7')
    e('s_lshl_b32 s17, s5, 17'); e('v_lshl_add_u32 v5, v1, 14, s17'); e(f'v_add_u32 v5, {KVM}, v5')
    e('v_cmp_gt_u32 vcc, 8, v1'); e('s_nop 1'); e('v_cndmask_b32 v4, v4, v5, vcc')
    for r in (4,6,7): e(f'v_lshl_add_u32 v{r}, v2, 4, v{r}'); e(f'v_add_u32 v{r}, s7, v{r}')
    for i in range(24): e(f'v_mov_b32 v{32+i}, 0')
    for ks in range(8):
        for t,r in enumerate((4,6,7)): e(f'buffer_load_dwordx4 v[{10+4*t}:{13+4*t}], v{r}, s[8:11], 0 offen offset:{ks*64}')
        e(f'buffer_load_dwordx4 v[24:27], v3, s[8:11], 0 offen offset:{ks*64}')
        e('v_add_u32 v9, 0x60000, v3'); e(f'buffer_load_dwordx4 v[28:31], v9, s[8:11], 0 offen offset:{ks*64}')
        e('s_waitcnt vmcnt(0)')
        for t in range(3):
            for b in range(2):
                c=32+4*(t*2+b); e(f'v_mfma_f32_16x16x32_bf16 v[{c}:{c+3}], v[{10+4*t}:{13+4*t}], v[{24+4*b}:{27+4*b}], v[{c}:{c+3}]')
    e('s_nop 7'); e('s_nop 7')
    e('v_xor_b32 v60, 16, v63'); e('v_lshlrev_b32 v60, 2, v60'); e('v_xor_b32 v61, 32, v63'); e('v_lshlrev_b32 v61, 2, v61')
    e('v_lshlrev_b32 v62, 2, v2')
    for b in range(2):
        regs=[32+4*(t*2+b)+r for t in range(3) for r in range(4)]
        for t in range(3):
            for r in range(4):
                c=32+4*(t*2+b)+r
                e(f'v_cvt_pk_bf16_f32 v{c}, v{c}, v{c}'); e(f'v_lshlrev_b32 v{c}, 16, v{c}'); e(f'v_mul_f32 v{c}, 0x3d800000, v{c}')
                e(f'v_add_u32 v9, {16*t+r-8-16*b+64}, v62'); e('v_add_u32 v243, 64, v1'); e('v_cmp_le_u32 vcc, v9, v243'); e('s_nop 1')
                e(f'v_cndmask_b32 v{c}, v59, v{c}, vcc' if False else f'v_mov_b32 v242, 0xce6e6b28\nv_cndmask_b32 v{c}, v242, v{c}, vcc')
        e(f'v_mov_b32 v241, v{regs[0]}')
        for c in regs[1:]: e(f'v_max_f32 v241, v241, v{c}')
        for a in (60,61): e(f'ds_bpermute_b32 v9, v{a}, v241'); e('s_waitcnt lgkmcnt(0)'); e('v_max_f32 v241, v241, v9')
        e('v_mov_b32 v240, 0')
        for c in regs: e(f'v_sub_f32 v{c}, v{c}, v241'); e(f'v_mul_f32 v{c}, 0x3fb8aa3b, v{c}'); e(f'v_exp_f32 v{c}, v{c}'); e('s_nop 0'); e(f'v_add_f32 v240, v240, v{c}')
        for a in (60,61): e(f'ds_bpermute_b32 v9, v{a}, v240'); e('s_waitcnt lgkmcnt(0)'); e('v_add_f32 v240, v240, v9')
        e('v_rcp_f32 v240, v240'); e('s_nop 0')
        for c in regs: e(f'v_mul_f32 v{c}, v{c}, v240'); e(f'v_cvt_pk_bf16_f32 v{c}, v{c}, v{c}'); e(f'v_lshlrev_b32 v{c}, 16, v{c}')
    e('v_lshlrev_b32 v3, 3, v63'); e('v_add_u32 v3, s7, v3')
    e('s_mul_i32 s18, s16, 24576'); e(f's_add_u32 s18, s18, {QKV+16384-8*24576}'); e(f's_add_u32 s19, s17, {KVM+8192}')
    e('v_add_u32 v4, s18, v3'); e('v_add_u32 v5, s19, v3')
    for k in range(40):
        if k<8: e(f'v_add_u32 v9, {k*16384}, v5')
        else: e(f'v_add_u32 v9, {k*24576}, v4')
        e(f'buffer_load_dwordx2 v[6:7], v9, s[8:11], 0 offen'); e('s_waitcnt vmcnt(0)')
        V=64+4*k
        e(f'v_lshlrev_b32 v{V}, 16, v6'); e(f'v_and_b32 v{V+1}, 0xffff0000, v6'); e(f'v_lshlrev_b32 v{V+2}, 16, v7'); e(f'v_and_b32 v{V+3}, 0xffff0000, v7')
    e('s_mul_i32 s18, s16, 8192'); e(f's_add_u32 s18, s18, {O}'); e('v_add_u32 v3, s18, v3')
    for m in range(32):
        b=m>>4
        for i in range(4): e(f'v_mov_b32 v{224+i}, 0')
        for k in range(40):
            if k>m+8: continue
            e(f'v_readlane_b32 s20, v{32+4*((k>>4)*2+b)+(k&3)}, {((k&15)>>2)*16+(m&15)}'); e('s_nop 1')
            for i in range(4): e(f'v_fmac_f32 v{224+i}, s20, v{64+4*k+i}')
        e('v_cvt_pk_bf16_f32 v6, v224, v225'); e('v_cvt_pk_bf16_f32 v7, v226, v227')
        e(f'v_add_u32 v9, {m*8192}, v3'); e('buffer_store_dwordx2 v[6:7], v9, s[8:11], 0 offen'); e('s_nop 1')
    lab(f'{name}_end'); kend(name,248)
```

```python
L=[]
def e(s):
    for l in s.strip('\n').split('\n'): L.append('    '+l.strip())
def lab(s): L.append(s+':')
KD=[]
def kstart(name):
    L.append(f'.globl {name}\n.p2align 8\n.type {name},@function\n{name}:')
def kend(name,vg=256,acc=None,sg=102):
    e('s_endpgm')
    acc = acc or ((min(vg,256)+3)//4*4)
    KD.append(f'''.p2align 6
.amdhsa_kernel {name}
  .amdhsa_next_free_vgpr {vg}
  .amdhsa_next_free_sgpr {sg}
  .amdhsa_accum_offset {acc}
  .amdhsa_group_segment_fixed_size 0
  .amdhsa_kernarg_size 128
  .amdhsa_user_sgpr_count 2
  .amdhsa_user_sgpr_kernarg_segment_ptr 1
  .amdhsa_system_sgpr_workgroup_id_x 1
.end_amdhsa_kernel''')
def srd(d,slot,size,off=0):
    e(f's_load_dwordx2 s[{d}:{d+1}], s[0:1], {slot*8}')
    e('s_waitcnt lgkmcnt(0)')
    if off:
        e(f's_add_u32 s{d}, s{d}, {off}'); e(f's_addc_u32 s{d+1}, s{d+1}, 0')
    e(f's_mov_b32 s{d+2}, {size}'); e(f's_mov_b32 s{d+3}, 0x00020000')
S,D,N=2048,448,4096
WT=0; WOT=WT+12288*448*2; Y=WOT+448*4096*2; X=Y+S*D*2; H=X+S*D*2
QKV=H+S*D*2; KVM=QKV+S*12288*2; O=KVM+64*8*8192*2
EXS=O+S*4096*2
EXA=EXS+2*64*64*1536
EXB=EXA+2*64*64*224
EXEND=EXB+2*64*64*128
WSZ=EXEND
```

```python
import lib,k0,k1,k2,k3,k4
from lib import *
np_=k0.gen(); k1.gen_kv(); k1.gen_conv(); k1.gen_row('rowa_kernel',1); k1.gen_row('rowb_kernel',0)
g2=k2.gen('qkv_kernel',4,2,12288,448,H,WT,0)
g5=k2.gen('woa_kernel',2,1,448,4096,O,WOT,1); k2.gen('wob_kernel',2,1,448,4096,O,WOT,2)
k3.gen('cha_kernel',0); k3.gen('chb_kernel',1); k4.gen('att_kernel')
ls=[('prep',np_,0),('kv',3584,0),('conv',224,0),('rowa',512,0),('qkv',g2,0),('cha',64,16384),('att',256,0),('woa',g5,0),('rowb',512,0),('qkv',g2,0),('chb',64,16384),('att',256,0),('wob',g5,0)]
h=''.join(f'; @launch kernel={k}_kernel grid=({g},1,1) block=(256,1,1) lds={l}\n' for k,g,l in ls)
open('interleave_layers__ssm_conv_h3__memory_aug_recurrent_mem_tr__prompt.s','w').write(h+'.amdgcn_target "amdgcn-amd-amdhsa--gfx950"\n.text\n'+'\n'.join(L)+'\n.section .rodata,"a"\n'+'\n'.join(KD)+'\n')
```
